```python
import torch

def _softmax(x, axis=-1):
    return torch.softmax(x, dim=axis)
def _gelu(x):
    return torch.nn.functional.gelu(x, approximate="tanh")
def _silu(x):
    return torch.nn.functional.silu(x)
def _sigmoid(x):
    return torch.sigmoid(x)
def _layernorm(x, axis=-1, eps=1e-5):
    m = x.mean(dim=axis, keepdim=True)
    v = x.var(dim=axis, keepdim=True, unbiased=False)
    return (x - m) / torch.sqrt(v + eps)
def _scatter_add(tgt, idx, src, axis=0):
    return tgt.clone().index_add_(axis, idx, src)
def _segment_sum(src, seg, n):
    out = torch.zeros((n,) + src.shape[1:], dtype=src.dtype)
    return out.index_add_(0, seg, src)
def _pad(x, pw):
    flat = tuple(v for pair in reversed(pw) for v in pair)
    return torch.nn.functional.pad(x, flat)

kernel_name = 'parallel_sum__compressed_kv_cla__glu_gated_swiglu__prompt'

def setup_inputs():

    _w = (lambda a: (lambda t: t.to(torch.bfloat16) if t.is_floating_point() else t)(torch.as_tensor(a)))
    def _A_setup():
        B, H, Sq, Sk, D, M = 1, 32, 2048, 2048, 128, 512
        Dc = 4 * D
        return {
            "x": _w((lambda *s: torch.randn(*s, dtype=torch.bfloat16) * 0.05)(B, Sq, M)),
            "c_kv": _w((lambda *s: torch.randn(*s, dtype=torch.bfloat16) * 0.4)(B, Sk, Dc)),
            "w_q": _w((lambda *s: torch.randn(*s, dtype=torch.bfloat16) * 1.6)(M, H, D) * (M ** -0.5)),
            "w_uk": _w((lambda *s: torch.randn(*s, dtype=torch.bfloat16) * 1.6)(Dc, H, D) * (Dc ** -0.5)),
            "w_uv": _w((lambda *s: torch.randn(*s, dtype=torch.bfloat16) * 0.4)(Dc, H, D) * (Dc ** -0.5)),
            "w_o": _w((lambda *s: torch.randn(*s, dtype=torch.bfloat16) * 0.4)(H, D, M) * ((H * D) ** -0.5)),
        }
    _A_in = _A_setup()

    def _B_setup():
        B, S, D, F = 1, 2048, 512, 1376
        return {
            "x": _w((lambda *s: torch.randn(*s, dtype=torch.bfloat16) * 0.05)(B, S, D)),
            "w1": _w((lambda *s: torch.randn(*s, dtype=torch.bfloat16) * 0.2)(D, F) * (2.0 / D) ** 0.5),
            "w3": _w((lambda *s: torch.randn(*s, dtype=torch.bfloat16) * 0.2)(D, F) * (2.0 / D) ** 0.5),
            "w2": _w((lambda *s: torch.randn(*s, dtype=torch.bfloat16) * 0.2)(F, D) * (2.0 / F) ** 0.5),
        }
    _B_in = _B_setup()

    return {
        "A_x": _A_in["x"],
        "A_c_kv": _A_in["c_kv"],
        "A_w_q": _A_in["w_q"],
        "A_w_uk": _A_in["w_uk"],
        "A_w_uv": _A_in["w_uv"],
        "A_w_o": _A_in["w_o"],
        "B_x": _B_in["x"],
        "B_w1": _B_in["w1"],
        "B_w3": _B_in["w3"],
        "B_w2": _B_in["w2"],
    }

def reference(A_x, A_c_kv, A_w_q, A_w_uk, A_w_uv, A_w_o, B_x, B_w1, B_w3, B_w2):
    def _A_ref(x, c_kv, w_q, w_uk, w_uv, w_o):
        B, Sq, M = x.shape[0], x.shape[1], x.shape[2]
        Sk = c_kv.shape[1]
        H, D = w_q.shape[1], w_q.shape[2]
        q = torch.einsum("bqm,mhd->bhqd", x, w_q)
        k = torch.einsum("bkc,chd->bhkd", c_kv, w_uk)
        v = torch.einsum("bkc,chd->bhkd", c_kv, w_uv)
        scores = torch.einsum("bhqd,bhkd->bhqk", q, k) * (D ** -0.5)
        off = Sk - Sq
        qi = torch.arange(Sq)[:, None]
        kj = torch.arange(Sk)[None, :]
        cmask = kj <= (qi + off)
        scores = torch.where(cmask[None, None], scores, -1e9)
        p = _softmax(scores, axis=-1)
        ctx = torch.einsum("bhqk,bhkd->bhqd", p, v)
        return torch.einsum("bhqd,hdm->bqm", ctx, w_o)

    def _B_ref(x, w1, w3, w2):
        gate = torch.einsum("bsd,df->bsf", x, w1)
        up = torch.einsum("bsd,df->bsf", x, w3)
        h = _silu(gate) * up
        out = torch.einsum("bsf,fd->bsd", h, w2)
        return out

    x = A_x
    xn = _layernorm(x, axis=-1)
    return x + _A_ref(xn, A_c_kv, A_w_q, A_w_uk, A_w_uv, A_w_o) + _B_ref(xn, B_w1, B_w3, B_w2)
```

```python
from core import *

WS_XN = 0
WS_K  = 0x0200000
WS_V  = 0x1200000
WS_AF = 0x2200000
AF_KS = 172
WS_PART = 0x3800000
XN_BYTES = 0x200000
KV_BYTES = 0x1000000
AF_BYTES = 128 * AF_KS * 1024

KA_X, KA_CKV, KA_WQ, KA_WUK, KA_WUV, KA_WO, KA_BX, KA_W1, KA_W3, KA_W2, KA_OUT, KA_DBG, KA_WS = [8 * i for i in range(13)]

def vr(b, n=1): return f'v{b}' if n == 1 else f'v[{b}:{b+n-1}]'
def ar(b, n=1): return f'a{b}' if n == 1 else f'a[{b}:{b+n-1}]'
def sr(b, n=1): return f's{b}' if n == 1 else f's[{b}:{b+n-1}]'

def mfma16(d, a, b, c):
    return Ins(f'v_mfma_f32_16x16x32_bf16 {d}, {a}, {b}, {c}')

def mfma(d, a, b, c):
    return Ins(f'v_mfma_f32_32x32x16_bf16 {d}, {a}, {b}, {c}')

def srd(s, base_lo, base_hi, nbytes):
    return [f's_mov_b32 s{s}, {base_lo}', f's_mov_b32 s{s+1}, {base_hi}',
            f's_mov_b32 s{s+2}, {nbytes:#x}', f's_mov_b32 s{s+3}, 0x20000']

def srd_off(s, lo, hi, off, nbytes):
    return [f's_add_u32 s{s}, s{lo}, {off:#x}', f's_addc_u32 s{s+1}, s{hi}, 0',
            f's_mov_b32 s{s+2}, {nbytes:#x}', f's_mov_b32 s{s+3}, 0x20000']

def kernel_header(name):
    return f'.globl {name}\n.p2align 8\n.type {name},@function\n{name}:\n'

def kernel_desc(name, vgpr, accum, sgpr=96):
    return f""".p2align 6
.amdhsa_kernel {name}
  .amdhsa_next_free_vgpr {vgpr}
  .amdhsa_next_free_sgpr {sgpr}
  .amdhsa_accum_offset {accum}
  .amdhsa_group_segment_fixed_size 0
  .amdhsa_kernarg_size 104
  .amdhsa_user_sgpr_count 2
  .amdhsa_user_sgpr_kernarg_segment_ptr 1
  .amdhsa_system_sgpr_workgroup_id_x 1
  .amdhsa_float_denorm_mode_32 3
.end_amdhsa_kernel
"""

def spread(slots, items, g0, g1):
    n = len(items)
    if n == 0: return
    span = g1 - g0
    for i, it in enumerate(items):
        g = g0 + (i * span) // n
        slots.setdefault(g, []).append(it)

def code_prefetch(name, start_label, end_label, nrounds, vtmp, vaddr16, stmp):
    L = [f's_getpc_b64 s[{stmp}:{stmp+1}]', f'L_pf_{name}:',
         f's_add_u32 s{stmp}, s{stmp}, {start_label}-L_pf_{name}', f's_addc_u32 s{stmp+1}, s{stmp+1}, 0']
    out = []
    out.extend(L)
    for i in range(nrounds):
        out.append(Ins(f'global_load_dword v{vtmp+i}, v{vaddr16}, s[{stmp}:{stmp+1}]', tag='pf'))
        if i + 1 < nrounds:
            out.append(f's_add_u32 s{stmp}, s{stmp}, 4096'); out.append(f's_addc_u32 s{stmp+1}, s{stmp+1}, 0')
    return out


class Stamps:
    def __init__(self, base_sgpr, enable, ws_off=0x4800000):
        self.b = base_sgpr; self.n = 0; self.on = enable; self.names = []; self.ws_off = ws_off
    def stamp(self, name):
        if not self.on: return []
        s = self.b + 2 * self.n; self.n += 1; self.names.append(name)
        op = 's_memrealtime' if name.startswith('rt') else 's_memtime'
        return [Ins(f'{op} s[{s}:{s+1}]')]
    def flush(self, ws_lo, ws_hi, wave_s, tmp_s, vt):
        if not self.on: return []
        L = ['s_waitcnt lgkmcnt(0)',
             f's_lshl_b32 s{tmp_s+2}, s2, 3', f's_add_u32 s{tmp_s+2}, s{tmp_s+2}, s{wave_s}', f's_lshl_b32 s{tmp_s+2}, s{tmp_s+2}, 7',
             f's_add_u32 s{tmp_s}, s{ws_lo}, {self.ws_off:#x}', f's_addc_u32 s{tmp_s+1}, s{ws_hi}, 0',
             f's_add_u32 s{tmp_s}, s{tmp_s}, s{tmp_s+2}', f's_addc_u32 s{tmp_s+1}, s{tmp_s+1}, 0',
             f'v_mov_b32 v{vt+1}, 0']
        for i in range(self.n):
            L.append(f'v_mov_b32 v{vt}, s{self.b + 2*i}')
            L.append(f'global_store_dword v{vt+1}, v{vt}, s[{tmp_s}:{tmp_s+1}] offset:{4*i}')
            L.append('s_nop 1')
        return L

def cost(ins):
    if isinstance(ins, (list, tuple)): return sum(cost(x) for x in ins)
    if isinstance(ins, str): return 1
    if ins.kind == 'valu' and ins.trans: return 2
    if ins.kind in ('label', 'dir'): return 0
    return 1

class Sched:
    def __init__(self, n, cap=2):
        self.n = n; self.cap = cap
        self.slots = {g: [] for g in range(-1, n)}
        self.used = {g: 0 for g in range(-1, n)}
    def put(self, g, ins, front=False):
        if isinstance(ins, str): ins = Ins(ins)
        g = min(g, self.n - 1)
        if isinstance(ins, (list, tuple)):
            self.slots[g].extend(ins)
        elif front: self.slots[g].insert(0, ins)
        else: self.slots[g].append(ins)
        self.used[g] += cost(ins)
        return g
    def flow(self, items, g0, g1, cap=None, step=1):
        cap = cap or self.cap
        n = len(items); g = g0
        for i, it in enumerate(items):
            if isinstance(it, str): it = Ins(it)
            want = g0 + (i * (g1 - g0)) // max(n, 1)
            g = max(g, want)
            c = cost(it)
            while g < self.n - 1 and self.used[g] + min(c, cap) > cap: g += 1
            self.put(g, it)
        return g
    def weave(self, mfmas):
        out = list(self.slots[-1])
        for g, m in enumerate(mfmas):
            out.append(m); out.extend(self.slots[g])
        return out

def flat(items):
    out = []
    for it in items:
        if isinstance(it, (list, tuple)): out.extend(flat(it))
        else: out.append(it)
    return out
```

```python
import re

REG_RE = re.compile(r'^(-|abs\()?([vas])(\d+)\)?$')
RNG_RE = re.compile(r'^(-)?([vas])\[(\d+):(\d+)\]$')

def regs_of(tok):
    tok = tok.strip()
    m = REG_RE.match(tok)
    if m:
        return [(m.group(2), int(m.group(3)))]
    m = RNG_RE.match(tok)
    if m:
        return [(m.group(2), i) for i in range(int(m.group(3)), int(m.group(4)) + 1)]
    if tok == 'vcc':
        return [('x', 'vcc')]
    if tok == 'exec':
        return [('x', 'exec')]
    if tok == 'm0':
        return [('x', 'm0')]
    return []

SCC_WRITERS = ('s_add_', 's_sub_', 's_addc_', 's_subb_', 's_and_', 's_or_', 's_xor_', 's_lshl_', 's_lshr_', 's_ashr_',
               's_cmp', 's_min_', 's_max_', 's_andn2', 's_not_', 's_bitcmp', 's_mul_hi' if False else 's_zzz',
               's_addk', 's_bfe', 's_and_saveexec', 's_or_saveexec', 's_lshl1_add', 's_lshl2_add', 's_lshl3_add', 's_lshl4_add')
TRANS = ('v_exp_f32', 'v_log_f32', 'v_rcp_f32', 'v_rsq_f32', 'v_sqrt_f32', 'v_sin_f32', 'v_cos_f32')

class Ins:
    def __init__(self, text, tag=None, first=False, note=None):
        self.text = text.strip()
        self.tag = tag
        self.first = first
        self.need_lg = None
        self.need_vm = None
        self.nops = 0
        self.parse()

    def __repr__(self):
        return self.text

    def parse(self):
        t = self.text
        self.rd = set(); self.wr = set()
        self.kind = 'other'
        if t.endswith(':') or t.startswith('.') or t.startswith(';'):
            self.kind = 'label' if t.endswith(':') else 'dir'
            self.op = ''
            return
        parts = t.split(None, 1)
        op = parts[0]; self.op = op
        rest = parts[1] if len(parts) > 1 else ''
        rest = rest.split(';')[0]
        ops = [x.strip() for x in rest.split(',')] if rest.strip() else []
        mods = ''
        if ops:
            last = ops[-1].split()
            if last:
                ops[-1] = last[0]
                mods = ' '.join(last[1:])
        self.mods = mods
        R = lambda i: regs_of(ops[i]) if i < len(ops) else []
        allr = lambda idx: [r for i in idx for r in R(i)]
        n = len(ops)
        if op.startswith('v_mfma'):
            self.kind = 'mfma'
            self.wr.update(R(0)); self.rd.update(allr(range(1, n)))
            self.A = set(R(1)); self.B = set(R(2)); self.C = set(R(3)); self.D = set(R(0))
            self.passes = 8 if '32x32' in op else 4
        elif op.startswith('ds_read') or op.startswith('ds_bpermute') or op.startswith('ds_swizzle'):
            self.kind = 'ds'; self.wr.update(R(0)); self.rd.update(allr(range(1, n)))
        elif op.startswith('ds_write') or op.startswith('ds_add') and 'rtn' not in op:
            self.kind = 'ds'; self.rd.update(allr(range(n)))
        elif op.startswith('buffer_load') and re.search(r'\blds\b', mods):
            self.kind = 'dma'; self.rd.update(allr(range(n))); self.rd.add(('x', 'm0'))
        elif op.startswith('global_load_lds'):
            self.kind = 'dma'; self.rd.update(allr(range(n))); self.rd.add(('x', 'm0'))
        elif op.startswith('buffer_load') or op.startswith('global_load'):
            self.kind = 'vload'; self.wr.update(R(0)); self.rd.update(allr(range(1, n)))
        elif op.startswith('buffer_store') or op.startswith('global_store'):
            self.kind = 'vstore'; self.rd.update(allr(range(n)))
            d = R(0) if op.startswith('buffer_store') else R(1)
            self.sdata = set(d) if ('x4' in op or 'x3' in op) else set()
        elif op.startswith('global_atomic') or op.startswith('buffer_atomic'):
            self.kind = 'vstore'; self.rd.update(allr(range(n))); self.sdata = set()
            if 'sc0' in mods:
                self.kind = 'vload'; self.wr.update(R(0))
        elif op in ('buffer_wbl2', 'buffer_inv'):
            self.kind = 'vstore'; self.sdata = set()
        elif op.startswith('s_load') or op.startswith('s_memtime') or op.startswith('s_memrealtime'):
            self.kind = 'smem'; self.wr.update(R(0)); self.rd.update(allr(range(1, n)))
        elif op == 's_waitcnt':
            self.kind = 'wait'
            full = rest
            m = re.search(r'vmcnt\((\d+)\)', full); self.w_vm = int(m.group(1)) if m else None
            m = re.search(r'lgkmcnt\((\d+)\)', full); self.w_lg = int(m.group(1)) if m else None
        elif op == 's_nop':
            self.kind = 'nop'; self.nstates = int(ops[0], 0) + 1
        elif op == 's_barrier':
            self.kind = 'barrier'
        elif op.startswith('s_cbranch') or op in ('s_branch', 's_setpc_b64', 's_swappc_b64', 's_endpgm'):
            self.kind = 'branch'
            if 'scc' in op: self.rd.add(('x', 'scc'))
            if 'vcc' in op: self.rd.add(('x', 'vcc'))
            if 'exec' in op: self.rd.add(('x', 'exec'))
            if op == 's_setpc_b64': self.rd.update(R(0))
            if op == 's_swappc_b64': self.wr.update(R(0)); self.rd.update(R(1))
        elif op.startswith('s_'):
            self.kind = 'salu'
            if op.startswith('s_cmp') or op.startswith('s_bitcmp'):
                self.rd.update(allr(range(n)))
            elif op in ('s_setprio', 's_sleep', 's_setreg_b32', 's_sethalt'):
                self.rd.update(allr(range(n)))
            else:
                self.wr.update(R(0)); self.rd.update(allr(range(1, n)))
            if any(op.startswith(p) for p in SCC_WRITERS): self.wr.add(('x', 'scc'))
            if op.startswith('s_addc') or op.startswith('s_subb') or op.startswith('s_cselect') or op.startswith('s_cmov'):
                self.rd.add(('x', 'scc'))
            if 'saveexec' in op:
                self.wr.add(('x', 'exec')); self.rd.add(('x', 'exec'))
            if op.startswith('s_addk') or op.startswith('s_cmov'): self.rd.update(R(0))
        elif op.startswith('v_'):
            self.kind = 'valu'
            self.trans = op.replace('_e32', '').replace('_e64', '') in TRANS
            self.dpp = 'row_' in mods or 'quad_perm' in mods or op.endswith('_dpp')
            if op.startswith('v_cmp'):
                self.wr.update(R(0)); self.rd.update(allr(range(1, n)))
            elif op.startswith('v_permlane') and 'swap' in op:
                self.wr.update(allr([0, 1])); self.rd.update(allr([0, 1]))
            elif op.startswith('v_add_co') or op.startswith('v_sub_co') or op.startswith('v_addc_co') or op.startswith('v_subb_co'):
                self.wr.update(allr([0, 1])); self.rd.update(allr(range(2, n)))
            elif op.startswith('v_fmac') or op.startswith('v_mac') or op.startswith('v_dot2c') or op.startswith('v_writelane'):
                self.wr.update(R(0)); self.rd.update(allr(range(0, n)))
            else:
                self.wr.update(R(0)); self.rd.update(allr(range(1, n)))
                if self.dpp: self.rd.update(R(0))
        else:
            raise ValueError("unknown op: " + t)

VM_KINDS = ('dma', 'vload', 'vstore')

class WaitVM(Ins):
    def __init__(self, tags, note=None):
        self.tags = set(tags) if tags is not None else None
        self.text = 's_waitcnt vmcnt(?)'; self.kind = 'waitvm'; self.op = 'waitvm'
        self.rd = set(); self.wr = set(); self.first = False; self.tag = None
        self.need_lg = None; self.need_vm = None; self.nops = 0
        self.n = 63

class WaitLG(Ins):
    def __init__(self, tags=None):
        self.tags = set(tags) if tags is not None else None
        self.text = 's_waitcnt lgkmcnt(?)'; self.kind = 'waitlg'; self.op = 'waitlg'
        self.rd = set(); self.wr = set(); self.first = False; self.tag = None
        self.need_lg = None; self.need_vm = None; self.nops = 0
        self.n = 15

class Prog:
    def __init__(self):
        self.blocks = {}
        self.order = []
        self.group = {}

    def block(self, name, items, group=0):
        out = []
        for it in items:
            if isinstance(it, str):
                for line in it.split('\n'):
                    if line.strip(): out.append(Ins(line))
            else:
                out.append(it)
        self.blocks[name] = out
        self.order.append(name)
        self.group[name] = group
        return out

    def simulate(self, path):
        seq = []
        for b in path:
            for ins in self.blocks[b]:
                seq.append((b, ins))
        lg_issued = 0; lg_done = 0
        vm_issued = 0; vm_done = 0
        pend_lg = {}; pend_vm = {}
        lg_tags = []; vm_tags = []
        smem_pending = set()
        n = len(seq)
        for idx, (b, ins) in enumerate(seq):
            k = ins.kind
            if k in ('label', 'dir'): continue
            if k == 'waitvm':
                need = 0
                for j in range(vm_issued, 0, -1):
                    if ins.tags is None or vm_tags[j - 1] in ins.tags:
                        need = j; break
                if need > vm_done or True:
                    nn = vm_issued - need if need > 0 else 63
                    ins.n = min(ins.n, max(0, min(63, nn)))
                    vm_done = max(vm_done, need)
                continue
            if k == 'waitlg':
                need = 0
                for j in range(lg_issued, 0, -1):
                    if ins.tags is None or lg_tags[j - 1] in ins.tags:
                        need = j; break
                nn = lg_issued - need if need > 0 else 15
                ins.n = min(ins.n, max(0, min(15, nn)))
                lg_done = max(lg_done, need)
                continue
            if k == 'wait':
                if ins.w_vm is not None: vm_done = max(vm_done, vm_issued - ins.w_vm)
                if ins.w_lg is not None:
                    lg_done = max(lg_done, lg_issued - ins.w_lg)
                    if ins.w_lg == 0: smem_pending.clear()
                continue
            touched = ins.rd | ins.wr
            if smem_pending & touched:
                raise RuntimeError(f"SMEM result used without lgkmcnt(0): {ins.text}")
            need_lg = max([pend_lg.get(r, 0) for r in touched], default=0)
            need_vm = max([pend_vm.get(r, 0) for r in touched], default=0)
            if need_lg > lg_done:
                g = self.group.get(b, 0)
                if g:
                    cnt = 0
                    for jdx in range(idx + 1, n):
                        b2, i2 = seq[jdx]
                        if b2 != b or i2.kind in ('label', 'branch', 'barrier'): break
                        if i2.kind == 'mfma':
                            cnt += 1
                            if cnt > g: break
                            t2 = max([pend_lg.get(r, 0) for r in i2.rd], default=0)
                            need_lg = max(need_lg, t2)
                nn = lg_issued - need_lg
                nn = min(nn, 15)
                ins.need_lg = nn if ins.need_lg is None else min(ins.need_lg, nn)
                lg_done = lg_issued - nn
            elif ins.need_lg is not None:
                lg_done = max(lg_done, lg_issued - ins.need_lg)
            if need_vm > vm_done:
                nn = min(vm_issued - need_vm, 63)
                ins.need_vm = nn if ins.need_vm is None else min(ins.need_vm, nn)
                vm_done = vm_issued - nn
            elif ins.need_vm is not None:
                vm_done = max(vm_done, vm_issued - ins.need_vm)
            if k == 'ds':
                lg_issued += 1; lg_tags.append(ins.tag)
                for r in ins.wr: pend_lg[r] = lg_issued
            elif k in VM_KINDS:
                vm_issued += 1; vm_tags.append(ins.tag)
                if k == 'vload':
                    for r in ins.wr: pend_vm[r] = vm_issued
            elif k == 'smem':
                smem_pending.update(ins.wr)
            for r in ins.wr:
                if k != 'ds' and r in pend_lg and pend_lg[r] <= lg_done: del pend_lg[r]
                if k != 'vload' and r in pend_vm and pend_vm[r] <= vm_done: del pend_vm[r]
        return seq

    def hazards(self, path):
        seq = []
        for b in path:
            for ins in self.blocks[b]:
                seq.append(ins)
        hist = []
        pos = 0
        last = []
        for ins in seq:
            k = ins.kind
            if k in ('label', 'dir'): continue
            extra = 0
            if ins.need_lg is not None or ins.need_vm is not None: pos += 1
            pos += ins.nops
            need = 0
            for (p, pr) in reversed(last):
                d = pos - p - 1
                if d >= 20: break
                req = self.hazard_req(pr, ins)
                if req > d: need = max(need, req - d)
            if need > 0:
                ins.nops += need
                pos += need
            last.append((pos, ins))
            if len(last) > 64: last.pop(0)
            if k == 'nop': pos += ins.nstates
            else: pos += 1

    @staticmethod
    def hazard_req(p, c):
        pk, ck = p.kind, c.kind
        isreg = lambda s: {r for r in s if r[0] in 'va'}
        req = 0
        if pk == 'valu':
            w = isreg(p.wr)
            if ck == 'mfma' and w & c.rd: req = max(req, 2)
            if ck == 'valu':
                if p.trans and not c.trans and w & (c.rd | c.wr): req = max(req, 1)
                if p.trans and c.trans and w & c.rd: req = max(req, 1)
                if c.op.startswith('v_permlane') and w & c.rd: req = max(req, 2)
                if (c.op.startswith('v_readfirstlane') or c.op.startswith('v_readlane')) and w & c.rd: req = max(req, 1)
                if c.dpp and w & c.rd: req = max(req, 2)
            ws = {r for r in p.wr if r[0] == 's' or r == ('x', 'vcc')}
            if ws:
                if ck == 'valu' and ws & c.rd: req = max(req, 2)
                if ck in VM_KINDS and ws & c.rd: req = max(req, 5)
                if ck == 'salu' and ws & c.rd: req = max(req, 1)
            if ('x', 'exec') in p.wr and ck in ('valu', 'mfma'): req = max(req, 4)
            if p.trans and ck in ('ds', 'vstore') and w & c.rd: req = max(req, 1)
        elif pk == 'mfma':
            D = p.D
            r_rw, r_ov, r_war = (12, 10, 7) if p.passes == 8 else (8, 6, 3)
            if ck == 'mfma':
                if D & (c.A | c.B): req = max(req, r_rw)
                if D & c.C and c.C != D: req = max(req, r_ov)
                if D & c.D and not (c.D == D and c.C == D): req = max(req, r_ov)
            elif ck in ('valu', 'ds', 'vload', 'vstore', 'dma'):
                if D & (c.rd | c.wr): req = max(req, r_rw)
                if ck == 'valu' and (p.C & c.wr): req = max(req, r_war)
        elif pk == 'salu':
            if ('x', 'm0') in p.wr and ck == 'dma': req = max(req, 1)
        elif pk == 'vstore':
            if getattr(p, 'sdata', None) and (p.sdata & c.wr):
                req = max(req, 2 if ck == 'valu' else 1)
        return req

    def check_scc(self):
        for b in self.order:
            prev = None; lastw = None
            for ins in self.blocks[b]:
                if ins.kind in ('label', 'dir', 'waitvm', 'waitlg', 'wait', 'nop'): continue
                if ('x', 'scc') in ins.rd:
                    if ins.op.startswith('s_addc') or ins.op.startswith('s_subb'):
                        ok = prev is not None and (prev.op.startswith('s_add_u32') or prev.op.startswith('s_sub_u32'))
                    else:
                        ok = lastw is not None and (lastw.op.startswith('s_cmp') or lastw.op.startswith('s_bitcmp'))
                        ok = ok and (prev is lastw or ('x', 'scc') in prev.rd)
                    assert ok, f'SCC reader separated from its writer in {b}: {prev} -> {ins}'
                if ('x', 'scc') in ins.wr: lastw = ins
                prev = ins

    def finalize(self, paths):
        self.check_scc()
        for it in range(2):
            for p in paths: self.simulate(p)
        for it in range(3):
            for p in paths: self.hazards(p)

    def text(self):
        out = []
        for b in self.order:
            for ins in self.blocks[b]:
                if ins.kind in ('label', 'dir'):
                    out.append(ins.text); continue
                w = []
                if ins.need_vm is not None: w.append(f'vmcnt({ins.need_vm})')
                if ins.need_lg is not None: w.append(f'lgkmcnt({ins.need_lg})')
                if w: out.append('  s_waitcnt ' + ' '.join(w))
                k = ins.nops
                while k > 0:
                    m = min(k, 16); out.append(f'  s_nop {m-1}'); k -= m
                if ins.kind == 'waitvm':
                    out.append(f'  s_waitcnt vmcnt({ins.n})')
                elif ins.kind == 'waitlg':
                    out.append(f'  s_waitcnt lgkmcnt({ins.n})')
                else:
                    out.append('  ' + ins.text)
        return '\n'.join(out) + '\n'

def weave(mfmas, slots):
    out = []
    for g, m in enumerate(mfmas):
        out.append(m)
        out.extend(slots.get(g, []))
    return out
```

```python
import sys, importlib
from common import *
HEADER = open('parallel_sum__compressed_kv_cla__glu_gated_swiglu__prompt.s.ref').read().split('; @launch')[0]
HEADER = '\n'.join(l for l in HEADER.split('\n') if l.startswith(';') and 'launch' not in l.lower()) + '\n'

def assemble(mods, out, debug=False):
    txt = HEADER
    for m, grid, block in mods:
        txt += f'; @launch kernel={m.NAME} grid=({grid},1,1) block=({block},1,1) lds={m.LDS}\n'
    txt += '.amdgcn_target "amdgcn-amd-amdhsa--gfx950"\n.text\n'
    for m, grid, block in mods:
        txt += m.build(debug)
    txt += '.p2align 8\n.fill 4096, 4, 0xBF810000\n'
    txt += '.section .rodata,"a"\n'
    for m, grid, block in mods:
        txt += m.DESC
    open(out, 'w').write(txt)
    return txt

if __name__ == '__main__':
    names = [a for a in sys.argv[2:] if a != '-g']
    debug = '-g' in sys.argv
    mods = []
    for n in names:
        m = importlib.import_module(n)
        mods.append((m, getattr(m, 'GRID', 256), getattr(m, 'BLOCK', 256)))
    t = assemble(mods, sys.argv[1], debug)
    if debug:
        import json; json.dump({m.NAME: m.build.names for m, _, _ in mods}, open(sys.argv[1] + '.names', 'w'))
    print(len(t), 'bytes')
```
